```python
import torch

def _softmax(x, axis=-1):
    return torch.softmax(x, dim=axis)
def _gelu(x):
    return torch.nn.functional.gelu(x, approximate="tanh")
def _silu(x):
    return torch.nn.functional.silu(x)
def _sigmoid(x):
    return torch.sigmoid(x)
def _layernorm(x, axis=-1, eps=1e-5):
    m = x.mean(dim=axis, keepdim=True)
    v = x.var(dim=axis, keepdim=True, unbiased=False)
    return (x - m) / torch.sqrt(v + eps)
def _scatter_add(tgt, idx, src, axis=0):
    return tgt.clone().index_add_(axis, idx, src)
def _segment_sum(src, seg, n):
    out = torch.zeros((n,) + src.shape[1:], dtype=src.dtype)
    return out.index_add_(0, seg, src)
def _pad(x, pw):
    flat = tuple(v for pair in reversed(pw) for v in pair)
    return torch.nn.functional.pad(x, flat)

kernel_name = 'gated_mix__ssm_conv_s4d__spectral_gfnet__prompt'

def setup_inputs():

    _w = (lambda a: (lambda t: t.to(torch.bfloat16) if t.is_floating_point() else t)(torch.as_tensor(a)))
    def _A_setup():
        Bsz, L, D, N = 1, 2048, 640, 128
        return {
            "u": _w((lambda *s: torch.randn(*s, dtype=torch.bfloat16) * 0.05)(Bsz, L, D)),
            "log_A_real": _w((lambda *s: torch.randn(*s, dtype=torch.bfloat16) * 3.2)(D, N) * 0.5),
            "A_imag": _w((lambda *s: torch.randn(*s, dtype=torch.bfloat16) * 0.05)(D, N) * 3.14),
            "C_real": _w((lambda *s: torch.randn(*s, dtype=torch.bfloat16) * 0.1)(D, N) / N ** 0.5),
            "C_imag": _w((lambda *s: torch.randn(*s, dtype=torch.bfloat16) * 0.1)(D, N) / N ** 0.5),
            "log_dt": _w((lambda *s: torch.randn(*s, dtype=torch.bfloat16) * 0.05)(D) * 0.5 - 4.0),
            "D_skip": _w((lambda *s: torch.randn(*s, dtype=torch.bfloat16) * 0.05)(D)),
        }
    _A_in = _A_setup()

    def _B_setup():
        B, S, D = 1, 2048, 640
        Df = D // 2 + 1
        return {
            "x": _w((lambda *s: torch.randn(*s, dtype=torch.bfloat16) * 0.05)(B, S, D)),
            "w_r": _w((lambda *s: torch.randn(*s, dtype=torch.bfloat16) * 0.8)(S, Df) * 0.02),
            "w_i": _w((lambda *s: torch.randn(*s, dtype=torch.bfloat16) * 0.8)(S, Df) * 0.02),
        }
    _B_in = _B_setup()

    return {
        "A_u": _A_in["u"],
        "A_log_A_real": _A_in["log_A_real"],
        "A_A_imag": _A_in["A_imag"],
        "A_C_real": _A_in["C_real"],
        "A_C_imag": _A_in["C_imag"],
        "A_log_dt": _A_in["log_dt"],
        "A_D_skip": _A_in["D_skip"],
        "B_x": _B_in["x"],
        "B_w_r": _B_in["w_r"],
        "B_w_i": _B_in["w_i"],
        "gate_w": _w((lambda *s: torch.randn(*s, dtype=torch.bfloat16) * 0.05)(640) * 16.0),
    }

def reference(A_u, A_log_A_real, A_A_imag, A_C_real, A_C_imag, A_log_dt, A_D_skip, B_x, B_w_r, B_w_i, gate_w):
    def _A_ref(u, log_A_real, A_imag, C_real, C_imag, log_dt, D_skip):
        L = u.shape[1]
        dt = torch.exp(log_dt)
        A = -torch.exp(log_A_real) + 1j * A_imag
        C = (C_real + 1j * C_imag) * dt[:, None]
        pos = (lambda x, dt: x.to(dt))(torch.arange(L), log_dt.dtype)
        P = torch.exp((A * dt[:, None])[:, :, None] * pos[None, None, :])
        K = 2.0 * torch.einsum("dn,dnl->dl", C, P).real
        L2 = 2 * L
        u_t = (lambda x, *d: x.permute(*d))(u, 0, 2, 1)
        Kf = (lambda x, *a, **k: torch.fft.rfft(x.float(), *a, **k))(K, L2)
        Uf = (lambda x, *a, **k: torch.fft.rfft(x.float(), *a, **k))(u_t, L2)
        y = (lambda x, *a, **k: torch.fft.irfft(x, *a, **k).to(torch.bfloat16))(Uf * Kf[None, :, :], L2)[:, :, :L]
        y = (lambda x, *d: x.permute(*d))(y, 0, 2, 1)
        return y + u * D_skip[None, None, :]

    def _B_ref(x, w_r, w_i):
        B, S, D = x.shape
        X = (lambda x, axes=(-2,-1): torch.fft.rfft2(x.float(), dim=axes))(x, axes=(-2, -1))
        W = w_r + 1j * w_i
        X = X * W
        y = (lambda x, s, axes=(-2,-1): torch.fft.irfft2(x, s=s, dim=axes).to(torch.bfloat16))(X, (S, D), axes=(-2, -1))
        return y

    x = A_u
    g = _sigmoid((x * gate_w).sum(-1, keepdims=True))
    a = _A_ref(x, A_log_A_real, A_A_imag, A_C_real, A_C_imag, A_log_dt, A_D_skip)
    b = _B_ref(x, B_w_r, B_w_i)
    return g * a + (1 - g) * b
```

```python
import struct

NAME = "gated_mix__ssm_conv_s4d__spectral_gfnet__prompt"

HEADER = """; Kernarg layout for this problem (112 bytes, ptrs only, base s[0:1]):
"""

ARG = dict(u=0, logA=8, Aim=16, Cre=24, Cim=32, logdt=40, Dskip=48, Bx=56, wr=64, wi=72, gate=80,
           out=88, dbg=96, ws=104)
SIZE = dict(u=2048*640*2, logA=640*128*2, Aim=640*128*2, Cre=640*128*2, Cim=640*128*2, logdt=1280,
            Dskip=1280, Bx=2048*640*2, wr=2048*321*2, wi=2048*321*2, gate=1280, out=2048*640*2,
            dbg=256, ws=268435456)

def f32(x):
    return "0x%08x" % struct.unpack("<I", struct.pack("<f", x))[0]

class Kernel:
    def __init__(self, name, grid, block, lds=0, vgpr=128, sgpr=96, agpr=0):
        self.name = name; self.grid = grid; self.block = block; self.lds = lds
        self.vgpr = vgpr; self.sgpr = sgpr; self.agpr = agpr
        self.lines = []
        self.nlab = 0
    def __call__(self, s):
        for ln in s.strip("\n").split("\n"):
            self.lines.append("    " + ln.strip() if not ln.strip().endswith(":") else ln.strip())
    def label(self, base):
        self.nlab += 1
        return f"L_{self.name}_{base}_{self.nlab}"
    def srd(self, sreg, arg, size=None, off=0):
        self(f"s_load_dwordx2 s[{sreg}:{sreg+1}], s[0:1], {ARG[arg]}")
        self(f"s_mov_b32 s{sreg+2}, {size if size is not None else SIZE[arg]}")
        self(f"s_mov_b32 s{sreg+3}, 0x00020000")
    def launch_line(self):
        g = self.grid; b = self.block
        return f"; @launch kernel={self.name} grid=({g},1,1) block=({b},1,1) lds={self.lds}"
    def text(self):
        o = [f".globl {self.name}", ".p2align 8", f".type {self.name},@function", f"{self.name}:"]
        o += self.lines
        return "\n".join(o)
    def desc(self):
        acc = (self.vgpr + 3) // 4 * 4
        nfv = acc + self.agpr if self.agpr else self.vgpr
        return f""".amdhsa_kernel {self.name}
  .amdhsa_next_free_vgpr {nfv}
  .amdhsa_next_free_sgpr {self.sgpr}
  .amdhsa_accum_offset {acc}
  .amdhsa_group_segment_fixed_size 0
  .amdhsa_kernarg_size 112
  .amdhsa_user_sgpr_count 2
  .amdhsa_user_sgpr_kernarg_segment_ptr 1
  .amdhsa_system_sgpr_workgroup_id_x 1
  .amdhsa_float_denorm_mode_32 3
.end_amdhsa_kernel"""

def build(launches, extra_comment=""):
    uniq = []
    for k in launches:
        if k not in uniq: uniq.append(k)
    o = [HEADER.rstrip("\n")]
    if extra_comment:
        o += ["; " + l for l in extra_comment.strip().split("\n")]
    o += [k.launch_line() for k in launches]
    o += ['.amdgcn_target "amdgcn-amd-amdhsa--gfx950"', ".text"]
    for k in uniq:
        o.append(k.text())
    o += ['.section .rodata,"a"']
    for k in uniq:
        o += [".p2align 6", k.desc()]
    return "\n".join(o) + "\n"
```

```python
import sys, math
from asmlib import *
LOG2E = 1.4426950408889634
INV2PI = 1/(2*math.pi)
KT = 0
A_ = KT + 2048*640*4
Z  = A_ + 2048*640*4
X2 = Z + 2048*384*8
Y  = X2 + 2048*384*8

def rbf(k, v, t):
    k(f"v_cvt_pk_bf16_f32 {v}, {v}, {v}")
    k(f"v_lshlrev_b32 {v}, 16, {v}")

def kgen():
    k = Kernel("n1_kernel", 640*8, 256, vgpr=64)
    end = k.label("end"); loop = k.label("loop")
    k(f"s_cmp_ge_u32 s2, {640*8}\ns_cbranch_scc1 {end}")
    k.srd(8,"logA"); k.srd(12,"Aim"); k.srd(16,"Cre"); k.srd(20,"Cim"); k.srd(24,"logdt"); k.srd(28,"ws")
    k(f"""
    s_lshr_b32 s4, s2, 3          ; d
    s_and_b32 s5, s2, 7
    s_lshl_b32 s5, s5, 8
    v_add_u32 v1, s5, v0          ; l
    v_cvt_f32_u32 v2, v1
    """)
    rbf(k, "v2", "v3")
    k(f"""
    s_waitcnt lgkmcnt(0)
    s_lshl_b32 s6, s4, 1
    v_mov_b32 v3, s6
    buffer_load_ushort v4, v3, s[24:27], 0 offen
    s_waitcnt vmcnt(0)
    v_lshlrev_b32 v4, 16, v4
    v_mul_f32 v4, {f32(LOG2E)}, v4
    v_exp_f32 v4, v4
    s_nop 1
    """)
    rbf(k, "v4", "v3")
    k(f"""
    s_lshl_b32 s6, s4, 8
    v_mov_b32 v3, s6
    v_mov_b32 v20, 0
    s_mov_b32 s7, 0
    {loop}:
    buffer_load_ushort v5, v3, s[8:11], 0 offen
    buffer_load_ushort v6, v3, s[12:15], 0 offen
    buffer_load_ushort v7, v3, s[16:19], 0 offen
    buffer_load_ushort v8, v3, s[20:23], 0 offen
    s_waitcnt vmcnt(0)
    v_lshlrev_b32 v5, 16, v5
    v_lshlrev_b32 v6, 16, v6
    v_lshlrev_b32 v7, 16, v7
    v_lshlrev_b32 v8, 16, v8
    v_mul_f32 v5, {f32(LOG2E)}, v5
    v_exp_f32 v5, v5
    s_nop 1
    """)
    rbf(k, "v5", "v9")
    k(f"""
    v_mul_f32 v5, v5, v4          ; |Are|*dt
    v_mul_f32 v6, v6, v4          ; Aim*dt
    v_mul_f32 v7, v7, v4
    v_mul_f32 v8, v8, v4
    v_mul_f32 v5, v5, v2
    v_mul_f32 v6, v6, v2
    v_mul_f32 v5, {f32(-LOG2E)}, v5
    v_mul_f32 v6, {f32(INV2PI)}, v6
    v_exp_f32 v5, v5
    v_fract_f32 v6, v6
    s_nop 1
    v_cos_f32 v9, v6
    v_sin_f32 v10, v6
    s_nop 1
    v_mul_f32 v9, v9, v7
    v_fma_f32 v9, -v10, v8, v9
    v_fma_f32 v20, v9, v5, v20
    v_add_u32 v3, 2, v3
    s_add_u32 s7, s7, 1
    s_cmp_lt_u32 s7, 128
    s_cbranch_scc1 {loop}
    v_add_f32 v20, v20, v20
    v_mul_u32_u24 v1, 2560, v1
    s_lshl_b32 s6, s4, 2
    v_add_u32 v1, s6, v1
    buffer_store_dword v20, v1, s[28:31], 0 offen
    {end}:
    s_endpgm
    """)
    return k

def conv():
    k = Kernel("n2_kernel", 2048*5, 128, vgpr=64)
    end = k.label("end"); loop = k.label("loop")
    k(f"s_cmp_ge_u32 s2, {2048*5}\ns_cbranch_scc1 {end}")
    k.srd(8,"u"); k.srd(12,"Dskip"); k.srd(28,"ws")
    k(f"""
    s_lshr_b32 s5, s2, 11         ; dblock
    s_and_b32 s4, s2, 2047        ; l
    s_lshl_b32 s5, s5, 7
    v_add_u32 v1, s5, v0          ; d
    v_lshlrev_b32 v2, 2, v1       ; K offset (j=0)
    s_mul_i32 s6, s4, 1280
    v_lshlrev_b32 v3, 1, v1
    v_add_u32 v4, s6, v3
    v_mov_b32 v5, v4
    v_mov_b32 v20, 0
    s_mov_b32 s7, 0
    s_waitcnt lgkmcnt(0)
    {loop}:
    buffer_load_dword v6, v2, s[28:31], 0 offen
    buffer_load_ushort v7, v5, s[8:11], 0 offen
    v_add_u32 v2, 2560, v2
    v_subrev_u32 v5, 1280, v5
    s_waitcnt vmcnt(0)
    v_lshlrev_b32 v7, 16, v7
    v_fma_f32 v20, v6, v7, v20
    s_add_u32 s7, s7, 1
    s_cmp_le_u32 s7, s4
    s_cbranch_scc1 {loop}
    buffer_load_ushort v7, v4, s[8:11], 0 offen
    buffer_load_ushort v8, v3, s[12:15], 0 offen
    s_waitcnt vmcnt(0)
    v_lshlrev_b32 v7, 16, v7
    v_lshlrev_b32 v8, 16, v8
    v_mul_f32 v7, v7, v8
    """)
    rbf(k,"v7","v9"); rbf(k,"v20","v9")
    k("v_add_f32 v20, v20, v7")
    rbf(k,"v20","v9")
    k(f"""
    v_lshlrev_b32 v4, 1, v4
    v_add_u32 v4, {A_}, v4
    buffer_store_dword v20, v4, s[28:31], 0 offen
    {end}:
    s_endpgm
    """)
    return k

def dfwd():
    k = Kernel("n3_kernel", 2048*3, 128, vgpr=64)
    end = k.label("end"); loop = k.label("loop")
    k(f"s_cmp_ge_u32 s2, {2048*3}\ns_cbranch_scc1 {end}")
    k.srd(8,"u"); k.srd(28,"ws")
    k(f"""
    s_lshr_b32 s5, s2, 11
    s_and_b32 s4, s2, 2047        ; s
    s_lshl_b32 s5, s5, 7
    v_add_u32 v1, s5, v0          ; k
    s_mul_i32 s6, s4, 1280
    v_mov_b32 v5, s6
    v_mov_b32 v20, 0
    v_mov_b32 v21, 0
    v_mov_b32 v2, 0               ; (d*k) mod 640
    s_mov_b32 s7, 0
    s_waitcnt lgkmcnt(0)
    {loop}:
    buffer_load_ushort v7, v5, s[8:11], 0 offen
    v_add_u32 v5, 2, v5
    v_cvt_f32_u32 v8, v2
    v_mul_f32 v8, {f32(1/640)}, v8
    v_cos_f32 v9, v8
    v_sin_f32 v10, v8
    v_add_u32 v2, v2, v1
    v_subrev_u32 v11, 640, v2
    v_min_u32 v2, v2, v11
    s_waitcnt vmcnt(0)
    v_lshlrev_b32 v7, 16, v7
    v_fma_f32 v20, v7, v9, v20
    v_fma_f32 v21, -v7, v10, v21
    s_add_u32 s7, s7, 1
    s_cmp_lt_u32 s7, 640
    s_cbranch_scc1 {loop}
    s_mul_i32 s6, s4, {384*8}
    s_add_u32 s6, s6, {Z}
    v_lshlrev_b32 v4, 3, v1
    v_add_u32 v4, s6, v4
    buffer_store_dwordx2 v[20:21], v4, s[28:31], 0 offen
    {end}:
    s_endpgm
    """)
    return k

def sdft(name, src, dst, inverse):
    k = Kernel(name, 2048*3, 128, vgpr=64)
    end = k.label("end"); loop = k.label("loop")
    k(f"s_cmp_ge_u32 s2, {2048*3}\ns_cbranch_scc1 {end}")
    k.srd(8,"wr"); k.srd(12,"wi"); k.srd(28,"ws")
    sg = "" if inverse else "-"
    sg2 = "-" if inverse else ""
    k(f"""
    s_lshr_b32 s5, s2, 11
    s_and_b32 s4, s2, 2047        ; f
    s_lshl_b32 s5, s5, 7
    v_add_u32 v1, s5, v0          ; k
    v_lshlrev_b32 v4, 3, v1
    v_add_u32 v5, {src}, v4
    v_mov_b32 v20, 0
    v_mov_b32 v21, 0
    s_mov_b32 s6, 0               ; (s*f) mod 2048
    s_mov_b32 s7, 0
    s_waitcnt lgkmcnt(0)
    {loop}:
    buffer_load_dwordx2 v[6:7], v5, s[28:31], 0 offen
    v_add_u32 v5, {384*8}, v5
    v_cvt_f32_u32 v8, s6
    v_mul_f32 v8, {f32(1/2048)}, v8
    v_cos_f32 v9, v8
    v_sin_f32 v10, v8
    s_add_u32 s6, s6, s4
    s_and_b32 s6, s6, 2047
    s_waitcnt vmcnt(0)
    v_fma_f32 v20, v6, v9, v20
    v_fma_f32 v21, v7, v9, v21
    v_fma_f32 v20, {sg2}v7, v10, v20
    v_fma_f32 v21, {sg}v6, v10, v21
    s_add_u32 s7, s7, 1
    s_cmp_lt_u32 s7, 2048
    s_cbranch_scc1 {loop}
    """)
    if not inverse:
        k(f"""
        s_mul_i32 s6, s4, 642
        v_min_u32 v8, 320, v1
        v_lshlrev_b32 v8, 1, v8
        v_add_u32 v8, s6, v8
        buffer_load_ushort v9, v8, s[8:11], 0 offen
        buffer_load_ushort v10, v8, s[12:15], 0 offen
        s_waitcnt vmcnt(0)
        v_lshlrev_b32 v9, 16, v9
        v_lshlrev_b32 v10, 16, v10
        v_mul_f32 v11, v20, v9
        v_mul_f32 v12, v20, v10
        v_fma_f32 v20, -v21, v10, v11
        v_fma_f32 v21, v21, v9, v12
        """)
    k(f"""
    s_mul_i32 s6, s4, {384*8}
    s_add_u32 s6, s6, {dst}
    v_add_u32 v4, s6, v4
    buffer_store_dwordx2 v[20:21], v4, s[28:31], 0 offen
    {end}:
    s_endpgm
    """)
    return k

def final(scale=1.0, noise=0.0):
    k = Kernel("n6_kernel", 2048*5, 128, vgpr=64)
    end = k.label("end"); loop = k.label("loop"); loop2 = k.label("loop2")
    k(f"s_cmp_ge_u32 s2, {2048*5}\ns_cbranch_scc1 {end}")
    k.srd(8,"u"); k.srd(12,"gate"); k.srd(16,"out"); k.srd(28,"ws")
    k(f"""
    s_lshr_b32 s5, s2, 11
    s_and_b32 s4, s2, 2047        ; s
    s_lshl_b32 s5, s5, 7
    v_add_u32 v1, s5, v0          ; d
    s_mul_i32 s6, s4, {384*8}
    s_add_u32 s6, s6, {Y}
    v_mov_b32 v5, s6
    v_mov_b32 v20, 0
    v_mov_b32 v2, 0               ; (d*k) mod 640
    s_mov_b32 s7, 0
    s_waitcnt lgkmcnt(0)
    {loop}:
    buffer_load_dwordx2 v[6:7], v5, s[28:31], 0 offen
    v_add_u32 v5, 8, v5
    v_cvt_f32_u32 v8, v2
    v_mul_f32 v8, {f32(1/640)}, v8
    v_cos_f32 v9, v8
    v_sin_f32 v10, v8
    v_add_u32 v2, v2, v1
    v_subrev_u32 v11, 640, v2
    v_min_u32 v2, v2, v11
    s_mov_b32 s20, 2.0
    s_cmp_eq_u32 s7, 0
    s_cselect_b32 s20, 1.0, s20
    s_cmp_eq_u32 s7, 320
    s_cselect_b32 s20, 1.0, s20
    s_waitcnt vmcnt(0)
    v_mul_f32 v6, v6, v9
    v_fma_f32 v6, -v7, v10, v6
    v_fma_f32 v20, s20, v6, v20
    s_add_u32 s7, s7, 1
    s_cmp_le_u32 s7, 320
    s_cbranch_scc1 {loop}
    v_mul_f32 v20, {f32(1/(2048*640))}, v20
    """)
    rbf(k,"v20","v9")
    k(f"""
    s_mul_i32 s6, s4, 1280
    v_mov_b32 v5, s6
    v_mov_b32 v6, 0
    v_mov_b32 v21, 0
    s_mov_b32 s7, 0
    {loop2}:
    buffer_load_ushort v7, v5, s[8:11], 0 offen
    buffer_load_ushort v8, v6, s[12:15], 0 offen
    v_add_u32 v5, 2, v5
    v_add_u32 v6, 2, v6
    s_waitcnt vmcnt(0)
    v_lshlrev_b32 v7, 16, v7
    v_lshlrev_b32 v8, 16, v8
    v_mul_f32 v7, v7, v8
    """)
    rbf(k,"v7","v9")
    k(f"""
    v_add_f32 v21, v21, v7
    s_add_u32 s7, s7, 1
    s_cmp_lt_u32 s7, 640
    s_cbranch_scc1 {loop2}
    """)
    rbf(k,"v21","v9")
    k(f"""
    v_mul_f32 v21, {f32(-LOG2E)}, v21
    v_exp_f32 v21, v21
    s_nop 1
    v_add_f32 v21, 1.0, v21
    v_rcp_f32 v21, v21
    s_nop 1
    """)
    rbf(k,"v21","v9")
    k(f"""
    s_mul_i32 s6, s4, 2560
    s_add_u32 s6, s6, {A_}
    v_lshlrev_b32 v4, 2, v1
    v_add_u32 v4, s6, v4
    buffer_load_dword v7, v4, s[28:31], 0 offen
    v_sub_f32 v22, 1.0, v21
    """)
    rbf(k,"v22","v9")
    k(f"""
    s_waitcnt vmcnt(0)
    v_mul_f32 v7, v7, v21
    v_mul_f32 v20, v20, v22
    """)
    rbf(k,"v7","v9"); rbf(k,"v20","v9")
    k("v_add_f32 v20, v20, v7")
    if scale != 1.0:
        k(f"v_mul_f32 v20, {f32(scale)}, v20")
    if noise != 0.0:
        k(f"""
        s_mul_i32 s6, s4, 640
        v_add_u32 v9, s6, v1
        s_mov_b32 s21, 0x9E3779B1
        v_mul_lo_u32 v9, v9, s21
        v_lshrrev_b32 v10, 15, v9
        v_xor_b32 v9, v9, v10
        s_mov_b32 s21, 0x85EBCA6B
        v_mul_lo_u32 v9, v9, s21
        v_lshrrev_b32 v10, 13, v9
        v_xor_b32 v9, v9, v10
        v_cvt_f32_i32 v9, v9
        v_mul_f32 v9, {f32(noise/2**31)}, v9
        v_add_f32 v20, v20, v9
        """)
    k(f"""
    v_cvt_pk_bf16_f32 v20, v20, v20
    s_mul_i32 s6, s4, 1280
    v_lshlrev_b32 v4, 1, v1
    v_add_u32 v4, s6, v4
    buffer_store_short v20, v4, s[16:19], 0 offen
    {end}:
    s_endpgm
    """)
    return k

def empty(grid=256, block=256):
    k = Kernel("e0_kernel", grid, block, vgpr=8, sgpr=16)
    k("s_endpgm")
    return k

if __name__ == "__main__":
    out = sys.argv[1]
    scale = float(sys.argv[2]) if len(sys.argv) > 2 else 1.0
    noise = float(sys.argv[3]) if len(sys.argv) > 3 else 0.0
    nempty = int(sys.argv[4]) if len(sys.argv) > 4 else 0
    L = [kgen(), conv(), dfwd(), sdft("n4_kernel", Z, X2, False), sdft("n5_kernel", X2, Y, True), final(scale, noise)]
    e = empty()
    L += [e]*nempty
    open(out, "w").write(build(L))
```
